```python
import torch

def _softmax(x, axis=-1):
    return torch.softmax(x, dim=axis)
def _gelu(x):
    return torch.nn.functional.gelu(x, approximate="tanh")
def _silu(x):
    return torch.nn.functional.silu(x)
def _sigmoid(x):
    return torch.sigmoid(x)
def _layernorm(x, axis=-1, eps=1e-5):
    m = x.mean(dim=axis, keepdim=True)
    v = x.var(dim=axis, keepdim=True, unbiased=False)
    return (x - m) / torch.sqrt(v + eps)
def _scatter_add(tgt, idx, src, axis=0):
    return tgt.clone().index_add_(axis, idx, src)
def _segment_sum(src, seg, n):
    out = torch.zeros((n,) + src.shape[1:], dtype=src.dtype)
    return out.index_add_(0, seg, src)
def _pad(x, pw):
    flat = tuple(v for pair in reversed(pw) for v in pair)
    return torch.nn.functional.pad(x, flat)

kernel_name = 'standalone__self_sup_conv_stem_hubert__speech'

def setup_inputs():

    _w = (lambda a: (lambda t: t.to(torch.bfloat16) if t.is_floating_point() else t)(torch.as_tensor(a)))
    B, T, D, K = 2, 4000, 256, 15
    scale = (1.0 / (K * D)) ** 0.5
    return {
        "x": _w((lambda *s: torch.randn(*s, dtype=torch.bfloat16) * 0.05)(B, T, D)),
        "w": _w((lambda *s: torch.randn(*s, dtype=torch.bfloat16) * 0.05)(K, D, D) * scale),
        "b": _w((lambda *s: torch.randn(*s, dtype=torch.bfloat16) * 0.05)(D) * 0.1),
        "gamma": _w(torch.ones((D,), dtype=float)),
        "beta": _w(torch.zeros((D,), dtype=float)),
    }

def reference(x, w, b, gamma, beta):
    B, T, D = x.shape
    K = w.shape[0]
    s = 2
    L = (T - K) // s + 1
    y = torch.einsum('blc,cd->bld', x[:, 0 : s * L : s, :], w[0])
    for i in range(1, K):
        y = y + torch.einsum('blc,cd->bld', x[:, i : i + s * L : s, :], w[i])
    y = y + b[None, None, :]
    mu = y.mean(1, keepdims=True)
    var = ((y - mu) ** 2).mean(1, keepdims=True)
    yn = (y - mu) / torch.sqrt(var + 1e-5)
    yn = yn * gamma[None, None, :] + beta[None, None, :]
    return _gelu(yn)
```

```python
import sys, math

KNAME = "standalone__self_sup_conv_stem_hubert__speech_kernel"
HEADER = """; Kernarg layout for this problem (64 bytes, ptrs only, base s[0:1]):
;   offset  40: d_out     shape=(2, 1993, 256) dtype=bfloat16 (2 bytes/elem)
; Design: 256 workgroups (one per CU). A pair of workgroups shares one 128(time) x 64(channel) output tile and
; private LDS region by LDS-DMA. Partial tiles and per-channel statistics are handed over as {data, tag} granules.
"""

WREG = 40960
A_GRP = 2176
A_BYTES = 8 * A_GRP
NSLOT = 11
B_SLOT = 2048
SPARE = A_BYTES + NSLOT * B_SLOT
ST1 = SPARE
ST2 = WREG + SPARE
WS_E = 0
WS_X = 0x10000
WS_S = 0x900000
WS_DIAG = 0xA00000
WS_BYTES = 0x1000000

class G:
    def __init__(self):
        self.L = []
        self.vm = []
        self.lg = []
        self.n = 0
        self.mf_w = {}
    def A(self, s):
        for line in s.split("\n"):
            line = line.strip()
            if not line: continue
            self.L.append("    " + line if not line.endswith(":") else line)
            if not line.endswith(":") and not line.startswith(";") and not line.startswith("."):
                if line.startswith("s_nop"):
                    self.n += int(line.split()[1]) + 1
                else:
                    self.n += 1
    def vmem(self, s, tag):
        self.A(s); self.vm.append(tag)
    def lds(self, s, tag):
        self.A(s); self.lg.append(tag)
    def wait(self, vm=(), lg=()):
        nv = None; nl = None
        for t in vm:
            if t in self.vm:
                k = len(self.vm) - 1 - self.vm.index(t)
                nv = k if nv is None else min(nv, k)
        for t in lg:
            if t in self.lg:
                k = len(self.lg) - 1 - self.lg.index(t)
                nl = k if nl is None else min(nl, k)
        parts = []
        if nv is not None:
            nv = min(nv, 63)
            parts.append("vmcnt(%d)" % nv)
            self.vm = self.vm[len(self.vm) - nv:] if nv else []
        if nl is not None:
            nl = min(nl, 15)
            parts.append("lgkmcnt(%d)" % nl)
            self.lg = self.lg[len(self.lg) - nl:] if nl else []
        if parts:
            self.A("s_waitcnt " + " ".join(parts))
    def wait_all_lg(self):
        self.A("s_waitcnt lgkmcnt(0)"); self.lg = []
    def wait_all_vm(self):
        self.A("s_waitcnt vmcnt(0)"); self.vm = []
    def pad_since(self, idx, states):
        have = self.n - idx - 1
        need = states - have
        while need > 0:
            k = min(need, 16)
            self.A("s_nop %d" % (k - 1)); need -= k


def gen(diag=False, N0=16, ramp=40, rate1=1, rate2=2, leadA=6, leadB=8, rot=1, prefetch=0, defer=2, recv_early=8):
    g = G(); A = g.A
    out = [HEADER + "; @launch grid=(256,1,1) block=(256,1,1) lds=163840",
           '.amdgcn_target "amdgcn-amd-amdhsa--gfx950"', ".text", ".globl " + KNAME, ".p2align 8",
           ".type %s,@function" % KNAME, KNAME + ":"]
    nstamp = [0]
    def stamp():
        if not diag: return
        i = nstamp[0]; nstamp[0] += 1
        A("s_memtime s[%d:%d]" % (64 + 2*i, 65 + 2*i))
        g.wait_all_lg()

    vL = "v1"
    vAd = ["v2", "v3", "v4"]
    vBd = ["v5", "v6"]
    vAr = [["v7", "v8"], ["v9", "v10"], ["v11", "v12"]]
    vBr = ["v13", "v14"]
    vRw = "v15"; vRr = ["v16", "v17"]
    vTag = "v18"; vBias = "v19"; vGam = "v20"; vBet = "v21"
    vT = ["v22", "v23", "v24", "v25", "v26", "v27"]
    vXo = "v28"
    vOo = "v29"
    vThr = "v30"
    vPf = "v31"
    POOL0 = 32
    pool = list(range(POOL0, 160, 4))
    SEND = 160
    RECV = 192
    sX, sW, sO, sS = "s[20:23]", "s[24:27]", "s[28:31]", "s[32:35]"

    A("s_cmp_ge_u32 s2, 256")
    A("s_cbranch_scc1 L_done")
    A("s_load_dwordx16 s[4:19], s[0:1], 0")
    if diag:
        A("s_memrealtime s[60:61]")
    A("v_lshrrev_b32 v22, 6, v0")
    A("v_and_b32 v1, 63, v0")
    A("s_and_b32 s36, s2, 1")
    A("v_readfirstlane_b32 s3, v22")
    A("s_bfe_u32 s37, s2, 0x20001")
    A("s_lshr_b32 s38, s2, 5")
    A("s_lshl_b32 s37, s37, 3")
    A("s_add_u32 s37, s37, s38")
    A("s_bfe_u32 s38, s2, 0x20003")
    A("s_lshr_b32 s39, s37, 4")
    A("s_and_b32 s40, s37, 15")
    if rot:
        A("s_and_b32 s41, s40, 1")
    else:
        A("s_mov_b32 s41, 0")
    A("s_mul_i32 s42, s39, 4000*512")
    A("s_lshl_b32 s43, s40, 17")
    A("s_add_u32 s42, s42, s43")
    A("s_lshl_b32 s43, s36, 8")
    A("s_lshl_b32 s44, s3, 6")
    A("s_add_u32 s43, s43, s44")
    A("s_add_u32 s42, s42, s43")
    A("s_lshl_b32 s43, s43, 8")
    A("s_lshl_b32 s44, s38, 7")
    A("s_add_u32 s43, s43, s44")
    A("s_lshl_b32 s44, s41, 13")
    A("s_xor_b32 s45, s44, 0x2000")
    A("s_add_u32 s44, s43, s44")
    A("s_add_u32 s45, s43, s45")
    A("s_mul_i32 s46, s3, %d" % WREG)
    A("v_lshrrev_b32 v22, 2, v1")
    A("v_lshrrev_b32 v23, 4, v1")
    A("v_xor_b32 v23, v23, v1")
    A("v_and_b32 v23, 3, v23")
    A("s_lshl_b32 s47, s41, 1")
    A("v_xor_b32 v23, s47, v23")
    A("v_lshlrev_b32 v22, 12, v22")
    A("v_lshl_add_u32 v2, v23, 4, v22")
    A("v_add_u32 v3, %d, v2" % (65536 - 1024))
    A("v_add_u32 v4, %d, v2" % (2 * (65536 - 1024)))
    A("v_lshrrev_b32 v22, 3, v1")
    A("v_lshrrev_b32 v23, 2, v1")
    A("v_lshrrev_b32 v24, 4, v1")
    A("v_xor_b32 v23, v23, v24")
    A("v_and_b32 v23, 1, v23")
    A("v_and_b32 v24, 3, v1")
    A("v_lshlrev_b32 v22, 9, v22")
    A("v_lshl_add_u32 v22, v23, 6, v22")
    A("v_lshl_add_u32 v5, v24, 4, v22")
    A("v_add_u32 v6, 3072, v5")
    A("s_waitcnt lgkmcnt(0)")
    A("s_mov_b32 s20, s4\ns_and_b32 s21, s5, 0xffff\ns_mov_b32 s22, 4096000\ns_mov_b32 s23, 0x20000")
    A("s_mov_b32 s24, s6\ns_and_b32 s25, s7, 0xffff\ns_mov_b32 s26, 1966080\ns_mov_b32 s27, 0x20000")
    stamp()

    if defer == 2:
        groups = [(0, 0, (0, 1)), (0, 1, (0, 1)), (1, 0, (1,)), (1, 1, (1,)), (1, 0, (0,)), (1, 1, (0,))]
    elif defer == 1:
        groups = [(0, 0, (0, 1)), (0, 1, (0, 1)), (1, 0, (0, 1)), (1, 1, (1,)), (1, 1, (0,))]
    mf = []
    for gi, (par, s, nhs) in enumerate(groups):
        for u in range(par, 21, 2):
            for j in range(4):
                k = u - 2 * j
                if 0 <= k <= 14:
                    for nh in nhs:
                        mf.append(((gi, u, s), (k, s, nh), (j, nh)))
    NM = len(mf)
    assert NM == 240
    first = {}; last = {}
    for m, (a, b, c) in enumerate(mf):
        for f in (("A",) + a, ("B",) + b):
            first.setdefault(f, m); last[f] = m
    bsteps = []
    for m, (a, b, c) in enumerate(mf):
        if (b[0], b[1]) not in bsteps: bsteps.append((b[0], b[1]))
    assert len(bsteps) == 30
    reads = []
    for f, m in first.items():
        if f[0] == "A":
            reads.append((m - leadA, m, f))
        else:
            mm = min(first[("B", f[1], f[2], 0)], first[("B", f[1], f[2], 1)])
            reads.append((mm - leadB, mm + (0.5 if m != mm else 0), f))
    reads.sort(key=lambda r: r[1])
    rpos = {}
    p = 0
    rl = []
    for want, order, f in reads:
        p = max(p, want, 0)
        rl.append((p, f)); rpos[f] = p
    dmas = []
    seenA = set()
    for (pp, f) in rl:
        if f[0] == "A":
            u = f[2]; rho = u & 7; v = u >> 3
            if (rho, "m") not in seenA:
                seenA.add((rho, "m")); dmas.append(("Am", rho))
            if v >= 1 and ("t", rho & 1) not in seenA:
                seenA.add(("t", rho & 1)); dmas.append(("At", rho & 1))
        else:
            st = (f[1], f[2])
            if ("B", st) not in dmas: dmas.append(("B", st))
    ninstr = {"Am": 2, "At": 4, "B": 2}
    dpos = []
    cnt = 0
    p = 0
    for d in dmas:
        if cnt < N0: want = 0
        else:
            e = cnt - N0 + 1
            want = e * rate1 if e * rate1 <= ramp else int(ramp + (e - ramp / rate1) * rate2)
        if d[0] == "B":
            bi = bsteps.index(d[1])
            if bi >= NSLOT:
                old = bsteps[bi - NSLOT]
                want = max(want, max(rpos[("B", old[0], old[1], 0)], rpos[("B", old[0], old[1], 1)]) + 2)
        p = max(p, want)
        dpos.append(p)
        cnt += ninstr[d[0]]
    def need_tags(f):
        if f[0] == "A":
            u = f[2]; t = [("Am", u & 7)]
            if u >> 3: t.append(("At", u & 1))
            return t
        return [("B", (f[1], f[2]))]
    for (pp, f) in rl:
        for t in need_tags(f):
            assert dpos[dmas.index(t)] <= pp, (f, pp, t, dpos[dmas.index(t)])

    def emit_dma(d):
        if d[0] == "Am":
            rho = d[1]
            A("s_add_u32 m0, s46, %d" % (rho * A_GRP))
            A("s_add_u32 s47, s42, %d" % (rho * 512))
            g.vmem("buffer_load_dwordx4 %s, %s, s47 offen lds" % (vAd[0], sX), ("x", d))
            g.vmem("buffer_load_dwordx4 %s, %s, s47 offen offset:1024 lds" % (vAd[1], sX), d)
        elif d[0] == "At":
            A("s_mov_b64 exec, 0xff")
            for i, rho in enumerate(range(d[1], 8, 2)):
                A("s_add_u32 m0, s46, %d" % (rho * A_GRP))
                A("s_add_u32 s47, s42, %d" % (rho * 512))
                g.vmem("buffer_load_dwordx4 %s, %s, s47 offen offset:2048 lds" % (vAd[2], sX), d if i == 3 else ("x", d, i))
            A("s_mov_b64 exec, -1")
        else:
            k, s = d[1]
            bi = bsteps.index(d[1])
            if bi >= NSLOT:
                old = bsteps[bi - NSLOT]
                g.wait(lg=[("B", old[0], old[1], 0), ("B", old[0], old[1], 1)])
            A("s_add_u32 m0, s46, %d" % (A_BYTES + (bi % NSLOT) * B_SLOT))
            A("s_add_u32 s47, s%d, %d" % (44 + s, k * 131072))
            g.vmem("buffer_load_dwordx4 %s, %s, s47 offen lds" % (vBd[0], sW), ("x", d))
            g.vmem("buffer_load_dwordx4 %s, %s, s47 offen offset:1024 lds" % (vBd[1], sW), d)

    di = 0
    while di < len(dmas) and dpos[di] == 0:
        emit_dma(dmas[di]); di += 1

    A("s_mov_b32 s32, s18\ns_and_b32 s33, s19, 0xffff\ns_mov_b32 s34, %d\ns_mov_b32 s35, 0x20000" % WS_BYTES)
    A("s_lshl_b32 s48, s39, 2")
    A("s_add_u32 s48, s48, s38")
    A("s_lshl_b32 s49, s48, 8")
    g.vmem("buffer_load_dword %s, off, %s, s49 sc1" % (vTag, sS), "tag")
    A("s_lshl_b32 s50, s38, 7")
    A("s_lshl_b32 s51, s36, 6")
    A("s_add_u32 s50, s50, s51")
    A("v_and_b32 v22, 31, v1")
    A("v_lshl_add_u32 v23, v22, 1, s50")
    g.vmem("global_load_ushort %s, v23, s[8:9]" % vBias, "bias")
    g.vmem("global_load_ushort %s, v23, s[10:11]" % vGam, "gam")
    g.vmem("global_load_ushort %s, v23, s[12:13]" % vBet, "bet")
    A("s_mul_i32 s51, s39, 1993*512")
    A("s_add_u32 s28, s14, s51")
    A("s_addc_u32 s29, s15, 0")
    A("s_and_b32 s29, s29, 0xffff")
    A("s_mov_b32 s30, 1993*512")
    A("s_mov_b32 s31, 0x20000")
    A("v_lshrrev_b32 v24, 5, v1")
    A("v_lshl_add_u32 v25, v24, 4, s3")
    A("s_lshl_b32 s51, s40, 7")
    A("v_add_u32 v26, s51, v25")
    A("v_lshl_add_u32 %s, v26, 9, v23" % vOo)
    A("v_sub_u32 %s, 1993, v26" % vThr)
    for v in range(3):
        A("v_add_u32 v25, %d, v22" % v)
        A("v_bfe_u32 v26, v25, 2, 2")
        A("v_xor_b32 v26, v26, v24")
        A("v_lshlrev_b32 v25, 6, v25")
        A("v_lshl_add_u32 v25, v26, 4, v25")
        A("v_add_u32 %s, s46, v25" % vAr[v][0])
        A("v_xor_b32 %s, 32, %s" % (vAr[v][1], vAr[v][0]))
    A("v_bfe_u32 v25, v1, 2, 2")
    A("v_lshl_add_u32 v25, v24, 3, v25")
    A("v_lshlrev_b32 v25, 7, v25")
    A("v_bfe_u32 v26, v1, 3, 1")
    A("v_xor_b32 v26, s36, v26")
    A("v_lshl_add_u32 v25, v26, 6, v25")
    A("v_bfe_u32 v26, v1, 4, 1")
    A("v_lshl_add_u32 v25, v26, 5, v25")
    A("v_and_b32 v26, 3, v1")
    A("v_lshl_add_u32 v25, v26, 3, v25")
    A("v_add_u32 %s, s46, v25" % vBr[0])
    A("v_xor_b32 %s, 64, %s" % (vBr[1], vBr[0]))
    A("v_lshlrev_b32 v25, 4, v1")
    A("v_add_u32 %s, s46, v25" % vRw)
    A("s_lshl_b32 s51, s3, 12")
    A("v_add_u32 %s, s51, v25" % vRr[0])
    A("v_add_u32 %s, %d, %s" % (vRr[1], 2 * WREG, vRr[0]))
    A("s_lshl_b32 s51, s3, 13")
    A("v_add_u32 %s, s51, v25" % vXo)
    A("s_lshl_b32 s52, s2, 15")
    A("s_add_u32 s52, s52, %d" % WS_X)
    A("s_xor_b32 s53, s52, 0x8000")
    A("s_lshl_b32 s54, s48, 1")
    A("s_add_u32 s54, s54, s36")
    A("s_lshl_b32 s54, s54, 13")
    A("s_add_u32 s54, s54, %d" % WS_S)

    reg = {}
    free = list(pool)
    def acc(c):
        b = (c[0] * 2 + c[1]) * 16
        return "a[%d:%d]" % (b, b + 15)
    started = set()
    lastm = {}
    for m, (a, b, c) in enumerate(mf): lastm[c] = m
    side = {}
    def at(pos, fn): side.setdefault(pos, []).append(fn)

    def emit_read(f):
        g.wait(vm=need_tags(f))
        r = free.pop(0); reg[f] = r
        if f[0] == "A":
            _, gi, u, s = f
            g.lds("ds_read_b128 v[%d:%d], %s offset:%d" % (r, r + 3, vAr[u >> 3][s], (u & 7) * A_GRP), f)
        else:
            _, k, s, nh = f
            off = A_BYTES + (bsteps.index((k, s)) % NSLOT) * B_SLOT
            g.lds("ds_read_b64_tr_b16 v[%d:%d], %s offset:%d" % (r, r + 1, vBr[nh], off), ("x",) + f)
            g.lds("ds_read_b64_tr_b16 v[%d:%d], %s offset:%d" % (r + 2, r + 3, vBr[nh], off + 512), f)

    def red_write(c):
        def fn():
            g.pad_since(g.mf_w[c], 12)
            b = (c[0] * 2 + c[1]) * 16
            for q in range(4):
                g.lds("ds_write_b128 %s, a[%d:%d] offset:%d" % (vRw, b + 4*q, b + 4*q + 3, A_BYTES + c[0] * 4096 + q * 1024), ("rw", c, q))
        return fn

    PR = {}
    def red_read(half, srcs):
        def fn():
            for src in srcs:
                for q in range(4):
                    r = PR[(src, q)]
                    g.lds("ds_read_b128 v[%d:%d], %s offset:%d" % (r, r + 3, vRr[src >> 1], A_BYTES + (src & 1) * WREG + q * 1024), ("rr", half, src, q))
        return fn

    oth_end = max(lastm[(j, 1)] for j in range(4))
    for j in range(4):
        at(lastm[(j, 1)] + 4, red_write((j, 1)))
    def bar_after_lds():
        g.wait_all_lg()
        A("s_barrier")
    at(oth_end + 7, bar_after_lds)
    def setPR_oth():
        for q in range(4):
            PR[(0, q)] = 224 + 4*q; PR[(1, q)] = 240 + 4*q
            PR[(2, q)] = RECV + 4*q; PR[(3, q)] = RECV + 16 + 4*q
    at(oth_end + 7, setPR_oth)
    for src in range(4):
        at(oth_end + 7 + src, red_read("oth", [src]))
    def tag_setup():
        g.wait(vm=["tag"])
        A("v_add_u32 %s, 0x9e3779b9, %s" % (vTag, vTag))
    at(oth_end - 8, tag_setup)
    def tag_fill(lo, hi):
        def fn():
            for e in range(lo, hi):
                A("v_mov_b32 v%d, %s" % (SEND + 2*e + 1, vTag))
        return fn
    for i in range(4):
        at(oth_end - 7 + i, tag_fill(4*i, 4*i + 4))
    def oth_add(q):
        def fn():
            g.wait(lg=[("rr", "oth", 3, q)])
            for e in range(4):
                A("v_add_f32 v%d, v%d, v%d" % (PR[(0, q)] + e, PR[(0, q)] + e, PR[(1, q)] + e))
                A("v_add_f32 v%d, v%d, v%d" % (PR[(2, q)] + e, PR[(2, q)] + e, PR[(3, q)] + e))
            for e in range(4):
                A("v_add_f32 v%d, v%d, v%d" % (SEND + 2*(4*q + e), PR[(0, q)] + e, PR[(2, q)] + e))
        return fn
    def oth_send(q):
        def fn():
            for hq in range(2):
                i = 2*q + hq
                off = i * 1024
                so = "s52"
                if off >= 4096:
                    A("s_add_u32 s47, s52, 4096"); so = "s47"; off -= 4096
                g.vmem("buffer_store_dwordx4 v[%d:%d], %s, %s, %s offen offset:%d sc1" % (SEND + 4*i, SEND + 4*i + 3, vXo, sS, so, off), ("send", i))
        return fn
    for q in range(4):
        at(oth_end + 13 + 3*q, oth_add(q))
        at(oth_end + 15 + 3*q, oth_send(q))
    own_first_done = min(lastm[(j, 0)] for j in range(4))
    bar2 = own_first_done + 2
    assert bar2 > oth_end + 13 + 3*3 + 1, (bar2, oth_end)
    at(bar2, lambda: A("s_barrier"))
    for j in range(4):
        pos = lastm[(j, 0)] + 4
        at(min(pos, NM), red_write((j, 0)))
    def recv():
        for i in range(8):
            off = i * 1024
            so = "s53"
            if off >= 4096:
                if i == 4: A("s_add_u32 s47, s53, 4096")
                so = "s47"; off -= 4096
            g.vmem("buffer_load_dwordx4 v[%d:%d], %s, %s, %s offen offset:%d sc1" % (RECV + 4*i, RECV + 4*i + 3, vXo, sS, so, off), ("recv", i))
    at(NM - recv_early, recv)

    ri = 0
    for m in range(NM + 1):
        while di < len(dmas) and dpos[di] <= m:
            emit_dma(dmas[di]); di += 1
        while ri < len(rl) and rl[ri][0] <= m:
            emit_read(rl[ri][1]); ri += 1
        for fn in side.get(m, []): fn()
        if m == NM: break
        a, b, c = mf[m]
        fa = ("A",) + a; fb = ("B",) + b
        g.wait(lg=[fa, fb])
        if m == 0: stamp()
        ra, rb = reg[fa], reg[fb]
        A("v_mfma_f32_32x32x16_bf16 %s, v[%d:%d], v[%d:%d], %s" % (acc(c), ra, ra + 3, rb, rb + 3, acc(c) if c in started else "0"))
        g.mf_w[c] = g.n - 1
        started.add(c)
        for f in (fa, fb):
            if last[f] == m:
                free.append(reg[f])
    assert di == len(dmas) and ri == len(rl)

    g.wait_all_lg()
    stamp()
    A("s_barrier")
    for src in range(4):
        for q in range(4): PR[(src, q)] = POOL0 + 16*src + 4*q
    red_read("own", [0, 1, 2, 3])()
    Y = POOL0
    for q in range(4):
        g.wait(lg=[("rr", "own", 1, q)])
        for e in range(4):
            A("v_add_f32 v%d, v%d, v%d" % (Y + 4*q + e, PR[(0, q)] + e, PR[(1, q)] + e))
    for q in range(4):
        g.wait(lg=[("rr", "own", 3, q)])
        for e in range(4):
            A("v_add_f32 v%d, v%d, v%d" % (PR[(2, q)] + e, PR[(2, q)] + e, PR[(3, q)] + e))
    for r in range(16):
        A("v_add_f32 v%d, v%d, v%d" % (Y + r, Y + r, PR[(2, 0)] + r))
    A("s_mov_b32 s55, 0")
    A("L_recv:")
    g.wait_all_vm()
    tg = [RECV + 2*e + 1 for e in range(16)]
    A("v_min3_u32 v22, v%d, v%d, v%d" % (tg[0], tg[1], tg[2]))
    A("v_max3_u32 v23, v%d, v%d, v%d" % (tg[0], tg[1], tg[2]))
    for i in range(3, 15, 2):
        A("v_min3_u32 v22, v22, v%d, v%d" % (tg[i], tg[i+1]))
        A("v_max3_u32 v23, v23, v%d, v%d" % (tg[i], tg[i+1]))
    A("v_min_u32 v22, v22, v%d" % tg[15])
    A("v_max_u32 v23, v23, v%d" % tg[15])
    A("v_cmp_eq_u32 vcc, v22, %s" % vTag)
    A("v_cmp_eq_u32 s[56:57], v23, %s" % vTag)
    A("s_nop 1")
    A("s_and_b64 s[56:57], s[56:57], vcc")
    A("s_cmp_eq_u64 s[56:57], -1")
    A("s_cbranch_scc1 L_recv_ok")
    A("s_add_u32 s55, s55, 1")
    A("s_cmp_ge_u32 s55, 0x40000")
    A("s_cbranch_scc1 L_recv_ok")
    recv()
    A("s_branch L_recv")
    A("L_recv_ok:")
    g.vm = []
    stamp()
    for r in range(16):
        A("v_add_f32 v%d, v%d, v%d" % (Y + r, Y + r, RECV + 2*r))
    A("s_cmp_lg_u32 s40, 15")
    A("s_cbranch_scc1 L_nomask")
    for r0 in range(0, 16, 4):
        for e in range(4):
            r = r0 + e
            cr = 4 * (r & 3) + 32 * (r >> 2)
            A("v_cmp_lt_i32 vcc, %d, %s" % (cr, vThr))
            A("s_mov_b64 s[%d:%d], vcc" % (56 + 2*(e & 1), 57 + 2*(e & 1)))
            A("s_nop 1")
            A("v_cndmask_b32 v%d, 0, v%d, vcc" % (Y + r, Y + r))
    A("L_nomask:")
    A("v_add_f32 v22, v%d, v%d" % (Y, Y + 1))
    A("v_mul_f32 v23, v%d, v%d" % (Y, Y))
    A("v_add_f32 v24, v%d, v%d" % (Y + 2, Y + 3))
    A("v_mul_f32 v25, v%d, v%d" % (Y + 1, Y + 1))
    for r in range(2, 16):
        A("v_fmac_f32 v%d, v%d, v%d" % (23 + 2*(r & 1), Y + r, Y + r))
        if r >= 4:
            A("v_add_f32 v%d, v%d, v%d" % (22 + 2*(r & 1), 22 + 2*(r & 1), Y + r))
    A("v_add_f32 v22, v22, v24")
    A("v_add_f32 v23, v23, v25")
    A("s_lshl_b32 s51, s3, 8")
    A("v_lshl_add_u32 v24, v1, 2, s51")
    A("v_permlane32_swap_b32 v22, v23")
    A("v_lshlrev_b32 v25, 2, v1")
    A("v_add_f32 v22, v22, v23")
    g.lds("ds_write_b32 v24, v22 offset:%d" % ST1, "st1")
    g.wait_all_lg()
    A("s_barrier")
    A("s_cmp_lg_u32 s3, 0")
    A("s_cbranch_scc1 L_nopub")
    A("ds_read2st64_b32 v[22:23], v25 offset0:%d offset1:%d" % (ST1 // 256, ST1 // 256 + 1))
    A("ds_read2st64_b32 v[26:27], v25 offset0:%d offset1:%d" % (ST1 // 256 + 2, ST1 // 256 + 3))
    A("v_and_b32 v24, 31, v1")
    A("v_lshrrev_b32 v25, 5, v1")
    A("v_lshlrev_b32 v24, 4, v24")
    A("v_lshl_add_u32 v24, v25, 3, v24")
    A("s_lshl_b32 s47, s40, 9")
    A("s_add_u32 s47, s47, s54")
    A("s_waitcnt lgkmcnt(0)")
    A("v_add_f32 v22, v22, v23")
    A("v_add_f32 v26, v26, v27")
    A("v_mov_b32 v23, %s" % vTag)
    A("v_add_f32 v22, v22, v26")
    A("buffer_store_dwordx2 v[22:23], v24, %s, s47 offen sc1" % sS)
    A("L_nopub:")
    stamp()
    A("s_lshl_b32 s47, s3, 11")
    A("s_add_u32 s47, s47, s54")
    A("v_lshlrev_b32 v24, 4, v1")
    A("s_mov_b32 s55, 0")
    A("L_gath:")
    A("buffer_load_dwordx4 v[48:51], v24, %s, s47 offen sc1" % sS)
    A("buffer_load_dwordx4 v[52:55], v24, %s, s47 offen offset:1024 sc1" % sS)
    A("s_waitcnt vmcnt(0)")
    A("v_min3_u32 v22, v49, v51, v53")
    A("v_max3_u32 v23, v49, v51, v53")
    A("v_min_u32 v22, v22, v55")
    A("v_max_u32 v23, v23, v55")
    A("v_cmp_eq_u32 vcc, v22, %s" % vTag)
    A("v_cmp_eq_u32 s[56:57], v23, %s" % vTag)
    A("s_nop 1")
    A("s_and_b64 s[56:57], s[56:57], vcc")
    A("s_cmp_eq_u64 s[56:57], -1")
    A("s_cbranch_scc1 L_gath_ok")
    A("s_add_u32 s55, s55, 1")
    A("s_cmp_lt_u32 s55, 0x40000")
    A("s_cbranch_scc1 L_gath")
    A("L_gath_ok:")
    stamp()
    A("v_add_f32 v22, v48, v52")
    A("v_add_f32 v23, v50, v54")
    A("v_and_b32 v24, 31, v1")
    A("v_lshlrev_b32 v24, 5, v24")
    A("v_permlane32_swap_b32 v22, v23")
    A("v_lshrrev_b32 v25, 5, v1")
    A("v_add_f32 v22, v22, v23")
    A("s_lshl_b32 s51, s3, 3")
    A("v_lshl_add_u32 v25, v25, 2, s51")
    A("v_add_u32 v25, v25, v24")
    A("v_add_u32 v25, %d, v25" % ST2)
    A("v_add_u32 v24, %d, v24" % ST2)
    A("ds_write_b32 v25, v22")
    A("s_waitcnt lgkmcnt(0)")
    A("s_barrier")
    A("ds_read_b128 v[48:51], v24")
    A("ds_read_b128 v[52:55], v24 offset:16")
    A("s_or_b32 s47, s40, s36")
    A("s_or_b32 s47, s47, s3")
    A("s_cmp_lg_u32 s47, 0")
    A("s_cbranch_scc1 L_noepoch")
    A("s_mov_b64 exec, 1")
    A("buffer_store_dword %s, off, %s, s49 sc1" % (vTag, sS))
    A("s_mov_b64 exec, -1")
    A("L_noepoch:")
    for i in range(8):
        A("v_add_u32 v%d, %d, %s" % (96 + i, (i & 1) * 4096 + (i >> 1) * 16384, vOo))
    A("v_lshlrev_b32 %s, 16, %s" % (vBias, vBias))
    A("v_lshlrev_b32 %s, 16, %s" % (vGam, vGam))
    A("v_lshlrev_b32 %s, 16, %s" % (vBet, vBet))
    A("s_waitcnt lgkmcnt(0)")
    A("v_add_f32 v22, v48, v50")
    A("v_add_f32 v23, v49, v51")
    A("v_add_f32 v24, v52, v54")
    A("v_add_f32 v25, v53, v55")
    A("v_add_f32 v22, v22, v24")
    A("v_add_f32 v23, v23, v25")
    import struct
    def fbits(x): return "0x%08x" % struct.unpack("<I", struct.pack("<f", x))[0]
    A("v_mul_f32 v22, %s, v22" % fbits(1.0 / 1993.0))
    A("v_mul_f32 v23, %s, v23" % fbits(1.0 / 1993.0))
    A("v_fma_f32 v23, -v22, v22, v23")
    A("v_max_f32 v23, 0, v23")
    A("v_add_f32 v23, %s, v23" % fbits(1e-5))
    A("v_rsq_f32 v23, v23")
    A("v_add_f32 v22, v22, %s" % vBias)
    A("v_sub_f32 v22, %s, v22" % vBias)
    A("v_mul_f32 v23, v23, %s" % vGam)
    A("v_fma_f32 v22, v22, v23, %s" % vBet)
    c2 = -2.0 * math.sqrt(2.0 / math.pi) * math.log2(math.e)
    A("s_mov_b32 s56, %s" % fbits(c2 * 0.044715))
    A("v_mov_b32 v24, %s" % fbits(c2))
    Z = 64; T = 80
    for r in range(16):
        A("v_fma_f32 v%d, v%d, v23, v22" % (Z + r, Y + r))
    for r in range(16):
        A("v_mul_f32 v%d, v%d, v%d" % (T + r, Z + r, Z + r))
    for r in range(16):
        A("v_fma_f32 v%d, v%d, s56, v24" % (T + r, T + r))
    for r in range(16):
        A("v_mul_f32 v%d, v%d, v%d" % (T + r, T + r, Z + r))
    for r in range(16):
        A("v_exp_f32 v%d, v%d" % (T + r, T + r))
    for r in range(16):
        A("v_add_f32 v%d, 1.0, v%d" % (T + r, T + r))
    for r in range(16):
        A("v_rcp_f32 v%d, v%d" % (T + r, T + r))
    for r in range(16):
        A("v_mul_f32 v%d, v%d, v%d" % (Z + r, Z + r, T + r))
    for r in range(0, 16, 2):
        A("v_cvt_pk_bf16_f32 v%d, v%d, v%d" % (T + r, Z + r, Z + r + 1))
    for r in range(0, 16, 2):
        for e in range(2):
            A("buffer_store_short%s v%d, v%d, %s, 0 offen offset:%d" % ("_d16_hi" if e else "", T + r, 96 + r // 2, sO, e * 2048))
    if diag:
        stamp()
        A("s_waitcnt vmcnt(0)")
        stamp()
        A("s_memrealtime s[62:63]")
        A("s_waitcnt lgkmcnt(0)")
        A("s_lshl_b32 s47, s2, 2")
        A("s_add_u32 s47, s47, s3")
        A("s_lshl_b32 s47, s47, 6")
        A("s_add_u32 s47, s47, %d" % WS_DIAG)
        for i in range(8):
            A("v_mov_b32 v%d, s%d" % (32 + i, 64 + 2*i))
        A("v_mov_b32 v40, s60\nv_mov_b32 v41, s62\nv_mov_b32 v42, s55\nv_mov_b32 v43, 0")
        A("s_mov_b64 exec, 1")
        A("buffer_store_dwordx4 v[32:35], off, %s, s47" % sS)
        A("buffer_store_dwordx4 v[36:39], off, %s, s47 offset:16" % sS)
        A("buffer_store_dwordx4 v[40:43], off, %s, s47 offset:32" % sS)
    A("L_done:")
    A("s_endpgm")
    out += g.L
    out += ['.section .rodata,"a"', ".p2align 6", ".amdhsa_kernel " + KNAME,
            "  .amdhsa_next_free_vgpr 384", "  .amdhsa_next_free_sgpr 96", "  .amdhsa_accum_offset 256",
            "  .amdhsa_group_segment_fixed_size 0", "  .amdhsa_kernarg_size 64", "  .amdhsa_user_sgpr_count 2",
            "  .amdhsa_user_sgpr_kernarg_segment_ptr 1", "  .amdhsa_system_sgpr_workgroup_id_x 1",
            "  .amdhsa_float_denorm_mode_32 3", ".end_amdhsa_kernel"]
    return "\n".join(out) + "\n"

if __name__ == "__main__":
    kw = {}
    path = "standalone__self_sup_conv_stem_hubert__speech.s"
    for a in sys.argv[1:]:
        k, v = a.split("=")
        if k == "out": path = v
        else: kw[k] = int(v)
    open(path, "w").write(gen(**kw))
    print("wrote", path)
```

```python
import sys, math

KNAME = "standalone__self_sup_conv_stem_hubert__speech_kernel"
HEADER = """; Kernarg layout for this problem (64 bytes, ptrs only, base s[0:1]):
;   offset  40: d_out     shape=(2, 1993, 256) dtype=bfloat16 (2 bytes/elem)
; Design: 256 workgroups (one per CU). A pair of workgroups shares one 128(time) x 64(channel) output tile and
; private LDS region by LDS-DMA. Partial tiles and per-channel statistics are handed over as {data, tag} granules.
"""

WREG = 40960
A_GRP = 2176
A_BYTES = 8 * A_GRP
NSLOT = 11
B_SLOT = 2048
SPARE = A_BYTES + NSLOT * B_SLOT
ST1 = SPARE
ST2 = WREG + SPARE
WS_E = 0
WS_X = 0x10000
WS_S = 0x900000
WS_DIAG = 0xA00000
WS_BYTES = 0x1000000

class G:
    def __init__(self):
        self.L = []
        self.vm = []
        self.lg = []
        self.n = 0
        self.mf_w = {}
    def A(self, s):
        for line in s.split("\n"):
            line = line.strip()
            if not line: continue
            self.L.append("    " + line if not line.endswith(":") else line)
            if not line.endswith(":") and not line.startswith(";") and not line.startswith("."):
                if line.startswith("s_nop"):
                    self.n += int(line.split()[1]) + 1
                else:
                    self.n += 1
    def vmem(self, s, tag):
        self.A(s); self.vm.append(tag)
    def lds(self, s, tag):
        self.A(s); self.lg.append(tag)
    def wait(self, vm=(), lg=()):
        nv = None; nl = None
        for t in vm:
            if t in self.vm:
                k = len(self.vm) - 1 - self.vm.index(t)
                nv = k if nv is None else min(nv, k)
        for t in lg:
            if t in self.lg:
                k = len(self.lg) - 1 - self.lg.index(t)
                nl = k if nl is None else min(nl, k)
        parts = []
        if nv is not None:
            nv = min(nv, 63)
            parts.append("vmcnt(%d)" % nv)
            self.vm = self.vm[len(self.vm) - nv:] if nv else []
        if nl is not None:
            nl = min(nl, 15)
            parts.append("lgkmcnt(%d)" % nl)
            self.lg = self.lg[len(self.lg) - nl:] if nl else []
        if parts:
            self.A("s_waitcnt " + " ".join(parts))
    def wait_all_lg(self):
        self.A("s_waitcnt lgkmcnt(0)"); self.lg = []
    def wait_all_vm(self):
        self.A("s_waitcnt vmcnt(0)"); self.vm = []
    def pad_since(self, idx, states):
        have = self.n - idx - 1
        need = states - have
        while need > 0:
            k = min(need, 16)
            self.A("s_nop %d" % (k - 1)); need -= k


def gen(diag=False, N0=16, ramp=40, rate1=1, rate2=2, leadA=6, leadB=8, rot=1, prefetch=0, defer=2, recv_early=8):
    g = G(); A = g.A
    out = [HEADER + "; @launch grid=(256,1,1) block=(256,1,1) lds=163840",
           '.amdgcn_target "amdgcn-amd-amdhsa--gfx950"', ".text", ".globl " + KNAME, ".p2align 8",
           ".type %s,@function" % KNAME, KNAME + ":"]
    nstamp = [0]
    def stamp():
        if not diag: return
        i = nstamp[0]; nstamp[0] += 1
        A("s_memtime s[%d:%d]" % (64 + 2*i, 65 + 2*i))
        g.wait_all_lg()

    vL = "v1"
    vAd = ["v2", "v3", "v4"]
    vBd = ["v5", "v6"]
    vAr = [["v7", "v8"], ["v9", "v10"], ["v11", "v12"]]
    vBr = ["v13", "v14"]
    vRw = "v15"; vRr = ["v16", "v17"]
    vTag = "v18"; vBias = "v19"; vGam = "v20"; vBet = "v21"
    vT = ["v22", "v23", "v24", "v25", "v26", "v27"]
    vXo = "v28"
    vOo = "v29"
    vThr = "v30"
    vPf = "v31"
    POOL0 = 32
    pool = list(range(POOL0, 160, 4))
    SEND = 160
    RECV = 192
    sX, sW, sO, sS = "s[20:23]", "s[24:27]", "s[28:31]", "s[32:35]"

    A("s_cmp_ge_u32 s2, 256")
    A("s_cbranch_scc1 L_done")
    A("s_load_dwordx16 s[4:19], s[0:1], 0")
    if diag:
        A("s_memrealtime s[60:61]")
    A("v_lshrrev_b32 v22, 6, v0")
    A("v_and_b32 v1, 63, v0")
    A("s_and_b32 s36, s2, 1")
    A("v_readfirstlane_b32 s3, v22")
    A("s_bfe_u32 s37, s2, 0x20001")
    A("s_lshr_b32 s38, s2, 5")
    A("s_lshl_b32 s37, s37, 3")
    A("s_add_u32 s37, s37, s38")
    A("s_bfe_u32 s38, s2, 0x20003")
    A("s_lshr_b32 s39, s37, 4")
    A("s_and_b32 s40, s37, 15")
    if rot:
        A("s_and_b32 s41, s40, 1")
    else:
        A("s_mov_b32 s41, 0")
    A("s_mul_i32 s42, s39, 4000*512")
    A("s_lshl_b32 s43, s40, 17")
    A("s_add_u32 s42, s42, s43")
    A("s_lshl_b32 s43, s36, 8")
    A("s_lshl_b32 s44, s3, 6")
    A("s_add_u32 s43, s43, s44")
    A("s_add_u32 s42, s42, s43")
    A("s_lshl_b32 s43, s43, 8")
    A("s_lshl_b32 s44, s38, 7")
    A("s_add_u32 s43, s43, s44")
    A("s_lshl_b32 s44, s41, 13")
    A("s_xor_b32 s45, s44, 0x2000")
    A("s_add_u32 s44, s43, s44")
    A("s_add_u32 s45, s43, s45")
    A("s_mul_i32 s46, s3, %d" % WREG)
    A("v_lshrrev_b32 v22, 2, v1")
    A("v_lshrrev_b32 v23, 4, v1")
    A("v_xor_b32 v23, v23, v1")
    A("v_and_b32 v23, 3, v23")
    A("s_lshl_b32 s47, s41, 1")
    A("v_xor_b32 v23, s47, v23")
    A("v_lshlrev_b32 v22, 12, v22")
    A("v_lshl_add_u32 v2, v23, 4, v22")
    A("v_add_u32 v3, %d, v2" % (65536 - 1024))
    A("v_add_u32 v4, %d, v2" % (2 * (65536 - 1024)))
    A("v_lshrrev_b32 v22, 3, v1")
    A("v_lshrrev_b32 v23, 2, v1")
    A("v_lshrrev_b32 v24, 4, v1")
    A("v_xor_b32 v23, v23, v24")
    A("v_and_b32 v23, 1, v23")
    A("v_and_b32 v24, 3, v1")
    A("v_lshlrev_b32 v22, 9, v22")
    A("v_lshl_add_u32 v22, v23, 6, v22")
    A("v_lshl_add_u32 v5, v24, 4, v22")
    A("v_add_u32 v6, 3072, v5")
    A("s_waitcnt lgkmcnt(0)")
    A("s_mov_b32 s20, s4\ns_and_b32 s21, s5, 0xffff\ns_mov_b32 s22, 4096000\ns_mov_b32 s23, 0x20000")
    A("s_mov_b32 s24, s6\ns_and_b32 s25, s7, 0xffff\ns_mov_b32 s26, 1966080\ns_mov_b32 s27, 0x20000")
    stamp()

    if defer == 2:
        groups = [(0, 0, (0, 1)), (0, 1, (0, 1)), (1, 0, (1,)), (1, 1, (1,)), (1, 0, (0,)), (1, 1, (0,))]
    elif defer == 1:
        groups = [(0, 0, (0, 1)), (0, 1, (0, 1)), (1, 0, (0, 1)), (1, 1, (1,)), (1, 1, (0,))]
    mf = []
    for gi, (par, s, nhs) in enumerate(groups):
        for u in range(par, 21, 2):
            for j in range(4):
                k = u - 2 * j
                if 0 <= k <= 14:
                    for nh in nhs:
                        mf.append(((gi, u, s), (k, s, nh), (j, nh)))
    NM = len(mf)
    assert NM == 240
    first = {}; last = {}
    for m, (a, b, c) in enumerate(mf):
        for f in (("A",) + a, ("B",) + b):
            first.setdefault(f, m); last[f] = m
    bsteps = []
    for m, (a, b, c) in enumerate(mf):
        if (b[0], b[1]) not in bsteps: bsteps.append((b[0], b[1]))
    assert len(bsteps) == 30
    reads = []
    for f, m in first.items():
        if f[0] == "A":
            reads.append((m - leadA, m, f))
        else:
            mm = min(first[("B", f[1], f[2], 0)], first[("B", f[1], f[2], 1)])
            reads.append((mm - leadB, mm + (0.5 if m != mm else 0), f))
    reads.sort(key=lambda r: r[1])
    rpos = {}
    p = 0
    rl = []
    for want, order, f in reads:
        p = max(p, want, 0)
        rl.append((p, f)); rpos[f] = p
    dmas = []
    seenA = set()
    for (pp, f) in rl:
        if f[0] == "A":
            u = f[2]; rho = u & 7; v = u >> 3
            if (rho, "m") not in seenA:
                seenA.add((rho, "m")); dmas.append(("Am", rho))
            if v >= 1 and ("t", rho & 1) not in seenA:
                seenA.add(("t", rho & 1)); dmas.append(("At", rho & 1))
        else:
            st = (f[1], f[2])
            if ("B", st) not in dmas: dmas.append(("B", st))
    ninstr = {"Am": 2, "At": 4, "B": 2}
    dpos = []
    cnt = 0
    p = 0
    for d in dmas:
        if cnt < N0: want = 0
        else:
            e = cnt - N0 + 1
            want = e * rate1 if e * rate1 <= ramp else int(ramp + (e - ramp / rate1) * rate2)
        if d[0] == "B":
            bi = bsteps.index(d[1])
            if bi >= NSLOT:
                old = bsteps[bi - NSLOT]
                want = max(want, max(rpos[("B", old[0], old[1], 0)], rpos[("B", old[0], old[1], 1)]) + 2)
        p = max(p, want)
        dpos.append(p)
        cnt += ninstr[d[0]]
    def need_tags(f):
        if f[0] == "A":
            u = f[2]; t = [("Am", u & 7)]
            if u >> 3: t.append(("At", u & 1))
            return t
        return [("B", (f[1], f[2]))]
    for (pp, f) in rl:
        for t in need_tags(f):
            assert dpos[dmas.index(t)] <= pp, (f, pp, t, dpos[dmas.index(t)])

    def emit_dma(d):
        if d[0] == "Am":
            rho = d[1]
            A("s_add_u32 m0, s46, %d" % (rho * A_GRP))
            A("s_add_u32 s47, s42, %d" % (rho * 512))
            g.vmem("buffer_load_dwordx4 %s, %s, s47 offen lds" % (vAd[0], sX), ("x", d))
            g.vmem("buffer_load_dwordx4 %s, %s, s47 offen offset:1024 lds" % (vAd[1], sX), d)
        elif d[0] == "At":
            A("s_mov_b64 exec, 0xff")
            for i, rho in enumerate(range(d[1], 8, 2)):
                A("s_add_u32 m0, s46, %d" % (rho * A_GRP))
                A("s_add_u32 s47, s42, %d" % (rho * 512))
                g.vmem("buffer_load_dwordx4 %s, %s, s47 offen offset:2048 lds" % (vAd[2], sX), d if i == 3 else ("x", d, i))
            A("s_mov_b64 exec, -1")
        else:
            k, s = d[1]
            bi = bsteps.index(d[1])
            if bi >= NSLOT:
                old = bsteps[bi - NSLOT]
                g.wait(lg=[("B", old[0], old[1], 0), ("B", old[0], old[1], 1)])
            A("s_add_u32 m0, s46, %d" % (A_BYTES + (bi % NSLOT) * B_SLOT))
            A("s_add_u32 s47, s%d, %d" % (44 + s, k * 131072))
            g.vmem("buffer_load_dwordx4 %s, %s, s47 offen lds" % (vBd[0], sW), ("x", d))
            g.vmem("buffer_load_dwordx4 %s, %s, s47 offen offset:1024 lds" % (vBd[1], sW), d)

    di = 0
    while di < len(dmas) and dpos[di] == 0:
        emit_dma(dmas[di]); di += 1

    A("s_mov_b32 s32, s18\ns_and_b32 s33, s19, 0xffff\ns_mov_b32 s34, %d\ns_mov_b32 s35, 0x20000" % WS_BYTES)
    A("s_lshl_b32 s48, s39, 2")
    A("s_add_u32 s48, s48, s38")
    A("s_lshl_b32 s49, s48, 8")
    g.vmem("buffer_load_dword %s, off, %s, s49 sc1" % (vTag, sS), "tag")
    A("s_lshl_b32 s50, s38, 7")
    A("s_lshl_b32 s51, s36, 6")
    A("s_add_u32 s50, s50, s51")
    A("v_and_b32 v22, 31, v1")
    A("v_lshl_add_u32 v23, v22, 1, s50")
    g.vmem("global_load_ushort %s, v23, s[8:9]" % vBias, "bias")
    g.vmem("global_load_ushort %s, v23, s[10:11]" % vGam, "gam")
    g.vmem("global_load_ushort %s, v23, s[12:13]" % vBet, "bet")
    A("s_mul_i32 s51, s39, 1993*512")
    A("s_add_u32 s28, s14, s51")
    A("s_addc_u32 s29, s15, 0")
    A("s_and_b32 s29, s29, 0xffff")
    A("s_mov_b32 s30, 1993*512")
    A("s_mov_b32 s31, 0x20000")
    A("v_lshrrev_b32 v24, 5, v1")
    A("v_lshl_add_u32 v25, v24, 4, s3")
    A("s_lshl_b32 s51, s40, 7")
    A("v_add_u32 v26, s51, v25")
    A("v_lshl_add_u32 %s, v26, 9, v23" % vOo)
    A("v_sub_u32 %s, 1993, v26" % vThr)
    for v in range(3):
        A("v_add_u32 v25, %d, v22" % v)
        A("v_bfe_u32 v26, v25, 2, 2")
        A("v_xor_b32 v26, v26, v24")
        A("v_lshlrev_b32 v25, 6, v25")
        A("v_lshl_add_u32 v25, v26, 4, v25")
        A("v_add_u32 %s, s46, v25" % vAr[v][0])
        A("v_xor_b32 %s, 32, %s" % (vAr[v][1], vAr[v][0]))
    A("v_bfe_u32 v25, v1, 2, 2")
    A("v_lshl_add_u32 v25, v24, 3, v25")
    A("v_lshlrev_b32 v25, 7, v25")
    A("v_bfe_u32 v26, v1, 3, 1")
    A("v_xor_b32 v26, s36, v26")
    A("v_lshl_add_u32 v25, v26, 6, v25")
    A("v_bfe_u32 v26, v1, 4, 1")
    A("v_lshl_add_u32 v25, v26, 5, v25")
    A("v_and_b32 v26, 3, v1")
    A("v_lshl_add_u32 v25, v26, 3, v25")
    A("v_add_u32 %s, s46, v25" % vBr[0])
    A("v_xor_b32 %s, 64, %s" % (vBr[1], vBr[0]))
    A("v_lshlrev_b32 v25, 4, v1")
    A("v_add_u32 %s, s46, v25" % vRw)
    A("s_lshl_b32 s51, s3, 12")
    A("v_add_u32 %s, s51, v25" % vRr[0])
    A("v_add_u32 %s, %d, %s" % (vRr[1], 2 * WREG, vRr[0]))
    A("s_lshl_b32 s51, s3, 13")
    A("v_add_u32 %s, s51, v25" % vXo)
    A("s_lshl_b32 s52, s2, 15")
    A("s_add_u32 s52, s52, %d" % WS_X)
    A("s_xor_b32 s53, s52, 0x8000")
    A("s_lshl_b32 s54, s48, 1")
    A("s_add_u32 s54, s54, s36")
    A("s_lshl_b32 s54, s54, 13")
    A("s_add_u32 s54, s54, %d" % WS_S)

    reg = {}
    free = list(pool)
    def acc(c):
        b = (c[0] * 2 + c[1]) * 16
        return "a[%d:%d]" % (b, b + 15)
    started = set()
    lastm = {}
    for m, (a, b, c) in enumerate(mf): lastm[c] = m
    side = {}
    def at(pos, fn): side.setdefault(pos, []).append(fn)

    def emit_read(f):
        g.wait(vm=need_tags(f))
        r = free.pop(0); reg[f] = r
        if f[0] == "A":
            _, gi, u, s = f
            g.lds("ds_read_b128 v[%d:%d], %s offset:%d" % (r, r + 3, vAr[u >> 3][s], (u & 7) * A_GRP), f)
        else:
            _, k, s, nh = f
            off = A_BYTES + (bsteps.index((k, s)) % NSLOT) * B_SLOT
            g.lds("ds_read_b64_tr_b16 v[%d:%d], %s offset:%d" % (r, r + 1, vBr[nh], off), ("x",) + f)
            g.lds("ds_read_b64_tr_b16 v[%d:%d], %s offset:%d" % (r + 2, r + 3, vBr[nh], off + 512), f)

    def red_write(c):
        def fn():
            g.pad_since(g.mf_w[c], 12)
            b = (c[0] * 2 + c[1]) * 16
            for q in range(4):
                g.lds("ds_write_b128 %s, a[%d:%d] offset:%d" % (vRw, b + 4*q, b + 4*q + 3, A_BYTES + c[0] * 4096 + q * 1024), ("rw", c, q))
        return fn

    PR = {}
    def red_read(half, srcs):
        def fn():
            for src in srcs:
                for q in range(4):
                    r = PR[(src, q)]
                    g.lds("ds_read_b128 v[%d:%d], %s offset:%d" % (r, r + 3, vRr[src >> 1], A_BYTES + (src & 1) * WREG + q * 1024), ("rr", half, src, q))
        return fn

    oth_end = max(lastm[(j, 1)] for j in range(4))
    for j in range(4):
        at(lastm[(j, 1)] + 4, red_write((j, 1)))
    def bar_after_lds():
        g.wait_all_lg()
        A("s_barrier")
    at(oth_end + 7, bar_after_lds)
    def setPR_oth():
        for q in range(4):
            PR[(0, q)] = 224 + 4*q; PR[(1, q)] = 240 + 4*q
            PR[(2, q)] = RECV + 4*q; PR[(3, q)] = RECV + 16 + 4*q
    at(oth_end + 7, setPR_oth)
    for src in range(4):
        at(oth_end + 7 + src, red_read("oth", [src]))
    def tag_setup():
        g.wait(vm=["tag"])
        A("v_add_u32 %s, 0x9e3779b9, %s" % (vTag, vTag))
    at(oth_end - 8, tag_setup)
    def tag_fill(lo, hi):
        def fn():
            for e in range(lo, hi):
                A("v_mov_b32 v%d, %s" % (SEND + 2*e + 1, vTag))
        return fn
    for i in range(4):
        at(oth_end - 7 + i, tag_fill(4*i, 4*i + 4))
    def oth_add(q):
        def fn():
            g.wait(lg=[("rr", "oth", 3, q)])
            for e in range(4):
                A("v_add_f32 v%d, v%d, v%d" % (PR[(0, q)] + e, PR[(0, q)] + e, PR[(1, q)] + e))
                A("v_add_f32 v%d, v%d, v%d" % (PR[(2, q)] + e, PR[(2, q)] + e, PR[(3, q)] + e))
            for e in range(4):
                A("v_add_f32 v%d, v%d, v%d" % (SEND + 2*(4*q + e), PR[(0, q)] + e, PR[(2, q)] + e))
        return fn
    def oth_send(q):
        def fn():
            for hq in range(2):
                i = 2*q + hq
                off = i * 1024
                so = "s52"
                if off >= 4096:
                    A("s_add_u32 s47, s52, 4096"); so = "s47"; off -= 4096
                g.vmem("buffer_store_dwordx4 v[%d:%d], %s, %s, %s offen offset:%d sc1" % (SEND + 4*i, SEND + 4*i + 3, vXo, sS, so, off), ("send", i))
        return fn
    for q in range(4):
        at(oth_end + 13 + 3*q, oth_add(q))
        at(oth_end + 15 + 3*q, oth_send(q))
    own_first_done = min(lastm[(j, 0)] for j in range(4))
    bar2 = own_first_done + 2
    assert bar2 > oth_end + 13 + 3*3 + 1, (bar2, oth_end)
    at(bar2, lambda: A("s_barrier"))
    for j in range(4):
        pos = lastm[(j, 0)] + 4
        at(min(pos, NM), red_write((j, 0)))
    def recv():
        for i in range(8):
            off = i * 1024
            so = "s53"
            if off >= 4096:
                if i == 4: A("s_add_u32 s47, s53, 4096")
                so = "s47"; off -= 4096
            g.vmem("buffer_load_dwordx4 v[%d:%d], %s, %s, %s offen offset:%d sc1" % (RECV + 4*i, RECV + 4*i + 3, vXo, sS, so, off), ("recv", i))
    at(NM - recv_early, recv)

    ri = 0
    for m in range(NM + 1):
        while di < len(dmas) and dpos[di] <= m:
            emit_dma(dmas[di]); di += 1
        while ri < len(rl) and rl[ri][0] <= m:
            emit_read(rl[ri][1]); ri += 1
        for fn in side.get(m, []): fn()
        if m == NM: break
        a, b, c = mf[m]
        fa = ("A",) + a; fb = ("B",) + b
        g.wait(lg=[fa, fb])
        if m == 0: stamp()
        ra, rb = reg[fa], reg[fb]
        A("v_mfma_f32_32x32x16_bf16 %s, v[%d:%d], v[%d:%d], %s" % (acc(c), ra, ra + 3, rb, rb + 3, acc(c) if c in started else "0"))
        g.mf_w[c] = g.n - 1
        started.add(c)
        for f in (fa, fb):
            if last[f] == m:
                free.append(reg[f])
    assert di == len(dmas) and ri == len(rl)

    g.wait_all_lg()
    stamp()
    A("s_barrier")
    for src in range(4):
        for q in range(4): PR[(src, q)] = POOL0 + 16*src + 4*q
    red_read("own", [0, 1, 2, 3])()
    Y = POOL0
    for q in range(4):
        g.wait(lg=[("rr", "own", 1, q)])
        for e in range(4):
            A("v_add_f32 v%d, v%d, v%d" % (Y + 4*q + e, PR[(0, q)] + e, PR[(1, q)] + e))
    for q in range(4):
        g.wait(lg=[("rr", "own", 3, q)])
        for e in range(4):
            A("v_add_f32 v%d, v%d, v%d" % (PR[(2, q)] + e, PR[(2, q)] + e, PR[(3, q)] + e))
    for r in range(16):
        A("v_add_f32 v%d, v%d, v%d" % (Y + r, Y + r, PR[(2, 0)] + r))
    A("s_mov_b32 s55, 0")
    A("L_recv:")
    g.wait_all_vm()
    tg = [RECV + 2*e + 1 for e in range(16)]
    A("v_min3_u32 v22, v%d, v%d, v%d" % (tg[0], tg[1], tg[2]))
    A("v_max3_u32 v23, v%d, v%d, v%d" % (tg[0], tg[1], tg[2]))
    for i in range(3, 15, 2):
        A("v_min3_u32 v22, v22, v%d, v%d" % (tg[i], tg[i+1]))
        A("v_max3_u32 v23, v23, v%d, v%d" % (tg[i], tg[i+1]))
    A("v_min_u32 v22, v22, v%d" % tg[15])
    A("v_max_u32 v23, v23, v%d" % tg[15])
    A("v_cmp_eq_u32 vcc, v22, %s" % vTag)
    A("v_cmp_eq_u32 s[56:57], v23, %s" % vTag)
    A("s_nop 1")
    A("s_and_b64 s[56:57], s[56:57], vcc")
    A("s_cmp_eq_u64 s[56:57], -1")
    A("s_cbranch_scc1 L_recv_ok")
    A("s_add_u32 s55, s55, 1")
    A("s_cmp_ge_u32 s55, 0x40000")
    A("s_cbranch_scc1 L_recv_ok")
    recv()
    A("s_branch L_recv")
    A("L_recv_ok:")
    g.vm = []
    stamp()
    for r in range(16):
        A("v_add_f32 v%d, v%d, v%d" % (Y + r, Y + r, RECV + 2*r))
    A("s_cmp_lg_u32 s40, 15")
    A("s_cbranch_scc1 L_nomask")
    for r0 in range(0, 16, 4):
        for e in range(4):
            r = r0 + e
            cr = 4 * (r & 3) + 32 * (r >> 2)
            A("v_cmp_lt_i32 vcc, %d, %s" % (cr, vThr))
            A("s_mov_b64 s[%d:%d], vcc" % (56 + 2*(e & 1), 57 + 2*(e & 1)))
            A("s_nop 1")
            A("v_cndmask_b32 v%d, 0, v%d, vcc" % (Y + r, Y + r))
    A("L_nomask:")
    A("v_add_f32 v22, v%d, v%d" % (Y, Y + 1))
    A("v_mul_f32 v23, v%d, v%d" % (Y, Y))
    A("v_add_f32 v24, v%d, v%d" % (Y + 2, Y + 3))
    A("v_mul_f32 v25, v%d, v%d" % (Y + 1, Y + 1))
    for r in range(2, 16):
        A("v_fmac_f32 v%d, v%d, v%d" % (23 + 2*(r & 1), Y + r, Y + r))
        if r >= 4:
            A("v_add_f32 v%d, v%d, v%d" % (22 + 2*(r & 1), 22 + 2*(r & 1), Y + r))
    A("v_add_f32 v22, v22, v24")
    A("v_add_f32 v23, v23, v25")
    A("s_lshl_b32 s51, s3, 8")
    A("v_lshl_add_u32 v24, v1, 2, s51")
    A("v_permlane32_swap_b32 v22, v23")
    A("v_lshlrev_b32 v25, 2, v1")
    A("v_add_f32 v22, v22, v23")
    g.lds("ds_write_b32 v24, v22 offset:%d" % ST1, "st1")
    g.wait_all_lg()
    A("s_barrier")
    A("s_cmp_lg_u32 s3, 0")
    A("s_cbranch_scc1 L_nopub")
    A("ds_read2st64_b32 v[22:23], v25 offset0:%d offset1:%d" % (ST1 // 256, ST1 // 256 + 1))
    A("ds_read2st64_b32 v[26:27], v25 offset0:%d offset1:%d" % (ST1 // 256 + 2, ST1 // 256 + 3))
    A("v_and_b32 v24, 31, v1")
    A("v_lshrrev_b32 v25, 5, v1")
    A("v_lshlrev_b32 v24, 4, v24")
    A("v_lshl_add_u32 v24, v25, 3, v24")
    A("s_lshl_b32 s47, s40, 9")
    A("s_add_u32 s47, s47, s54")
    A("s_waitcnt lgkmcnt(0)")
    A("v_add_f32 v22, v22, v23")
    A("v_add_f32 v26, v26, v27")
    A("v_mov_b32 v23, %s" % vTag)
    A("v_add_f32 v22, v22, v26")
    A("buffer_store_dwordx2 v[22:23], v24, %s, s47 offen sc1" % sS)
    A("L_nopub:")
    stamp()
    A("s_lshl_b32 s47, s3, 11")
    A("s_add_u32 s47, s47, s54")
    A("v_lshlrev_b32 v24, 4, v1")
    A("s_mov_b32 s55, 0")
    A("L_gath:")
    A("buffer_load_dwordx4 v[48:51], v24, %s, s47 offen sc1" % sS)
    A("buffer_load_dwordx4 v[52:55], v24, %s, s47 offen offset:1024 sc1" % sS)
    A("s_waitcnt vmcnt(0)")
    A("v_min3_u32 v22, v49, v51, v53")
    A("v_max3_u32 v23, v49, v51, v53")
    A("v_min_u32 v22, v22, v55")
    A("v_max_u32 v23, v23, v55")
    A("v_cmp_eq_u32 vcc, v22, %s" % vTag)
    A("v_cmp_eq_u32 s[56:57], v23, %s" % vTag)
    A("s_nop 1")
    A("s_and_b64 s[56:57], s[56:57], vcc")
    A("s_cmp_eq_u64 s[56:57], -1")
    A("s_cbranch_scc1 L_gath_ok")
    A("s_add_u32 s55, s55, 1")
    A("s_cmp_lt_u32 s55, 0x40000")
    A("s_cbranch_scc1 L_gath")
    A("L_gath_ok:")
    stamp()
    A("v_add_f32 v22, v48, v52")
    A("v_add_f32 v23, v50, v54")
    A("v_and_b32 v24, 31, v1")
    A("v_lshlrev_b32 v24, 5, v24")
    A("v_permlane32_swap_b32 v22, v23")
    A("v_lshrrev_b32 v25, 5, v1")
    A("v_add_f32 v22, v22, v23")
    A("s_lshl_b32 s51, s3, 3")
    A("v_lshl_add_u32 v25, v25, 2, s51")
    A("v_add_u32 v25, v25, v24")
    A("v_add_u32 v25, %d, v25" % ST2)
    A("v_add_u32 v24, %d, v24" % ST2)
    A("ds_write_b32 v25, v22")
    A("s_waitcnt lgkmcnt(0)")
    A("s_barrier")
    A("ds_read_b128 v[48:51], v24")
    A("ds_read_b128 v[52:55], v24 offset:16")
    A("s_or_b32 s47, s40, s36")
    A("s_or_b32 s47, s47, s3")
    A("s_cmp_lg_u32 s47, 0")
    A("s_cbranch_scc1 L_noepoch")
    A("s_mov_b64 exec, 1")
    A("buffer_store_dword %s, off, %s, s49 sc1" % (vTag, sS))
    A("s_mov_b64 exec, -1")
    A("L_noepoch:")
    for i in range(8):
        A("v_add_u32 v%d, %d, %s" % (96 + i, (i & 1) * 4096 + (i >> 1) * 16384, vOo))
    A("v_lshlrev_b32 %s, 16, %s" % (vBias, vBias))
    A("v_lshlrev_b32 %s, 16, %s" % (vGam, vGam))
    A("v_lshlrev_b32 %s, 16, %s" % (vBet, vBet))
    A("s_waitcnt lgkmcnt(0)")
    A("v_add_f32 v22, v48, v50")
    A("v_add_f32 v23, v49, v51")
    A("v_add_f32 v24, v52, v54")
    A("v_add_f32 v25, v53, v55")
    A("v_add_f32 v22, v22, v24")
    A("v_add_f32 v23, v23, v25")
    import struct
    def fbits(x): return "0x%08x" % struct.unpack("<I", struct.pack("<f", x))[0]
    A("v_mul_f32 v22, %s, v22" % fbits(1.0 / 1993.0))
    A("v_mul_f32 v23, %s, v23" % fbits(1.0 / 1993.0))
    A("v_fma_f32 v23, -v22, v22, v23")
    A("v_max_f32 v23, 0, v23")
    A("v_add_f32 v23, %s, v23" % fbits(1e-5))
    A("v_rsq_f32 v23, v23")
    A("v_add_f32 v22, v22, %s" % vBias)
    A("v_sub_f32 v22, %s, v22" % vBias)
    A("v_mul_f32 v23, v23, %s" % vGam)
    A("v_fma_f32 v22, v22, v23, %s" % vBet)
    c2 = -2.0 * math.sqrt(2.0 / math.pi) * math.log2(math.e)
    A("s_mov_b32 s56, %s" % fbits(c2 * 0.044715))
    A("v_mov_b32 v24, %s" % fbits(c2))
    Z = 64; T = 80
    for r in range(16):
        A("v_fma_f32 v%d, v%d, v23, v22" % (Z + r, Y + r))
    for r in range(16):
        A("v_mul_f32 v%d, v%d, v%d" % (T + r, Z + r, Z + r))
    for r in range(16):
        A("v_fma_f32 v%d, v%d, s56, v24" % (T + r, T + r))
    for r in range(16):
        A("v_mul_f32 v%d, v%d, v%d" % (T + r, T + r, Z + r))
    for r in range(16):
        A("v_exp_f32 v%d, v%d" % (T + r, T + r))
    for r in range(16):
        A("v_add_f32 v%d, 1.0, v%d" % (T + r, T + r))
    for r in range(16):
        A("v_rcp_f32 v%d, v%d" % (T + r, T + r))
    for r in range(16):
        A("v_mul_f32 v%d, v%d, v%d" % (Z + r, Z + r, T + r))
    for r in range(0, 16, 2):
        A("v_cvt_pk_bf16_f32 v%d, v%d, v%d" % (T + r, Z + r, Z + r + 1))
    for r in range(0, 16, 2):
        for e in range(2):
            A("buffer_store_short%s v%d, v%d, %s, 0 offen offset:%d" % ("_d16_hi" if e else "", T + r, 96 + r // 2, sO, e * 2048))
    if diag:
        stamp()
        A("s_waitcnt vmcnt(0)")
        stamp()
        A("s_memrealtime s[62:63]")
        A("s_waitcnt lgkmcnt(0)")
        A("s_lshl_b32 s47, s2, 2")
        A("s_add_u32 s47, s47, s3")
        A("s_lshl_b32 s47, s47, 6")
        A("s_add_u32 s47, s47, %d" % WS_DIAG)
        for i in range(8):
            A("v_mov_b32 v%d, s%d" % (32 + i, 64 + 2*i))
        A("v_mov_b32 v40, s60\nv_mov_b32 v41, s62\nv_mov_b32 v42, s55\nv_mov_b32 v43, 0")
        A("s_mov_b64 exec, 1")
        A("buffer_store_dwordx4 v[32:35], off, %s, s47" % sS)
        A("buffer_store_dwordx4 v[36:39], off, %s, s47 offset:16" % sS)
        A("buffer_store_dwordx4 v[40:43], off, %s, s47 offset:32" % sS)
        if diag == 2:
            A("s_mov_b32 s20, s16\ns_and_b32 s21, s17, 0xffff\ns_mov_b32 s22, 256\ns_mov_b32 s23, 0x20000")
            A("s_not_b32 s47, s60")
            A("v_mov_b32 v44, s47")
            A("buffer_atomic_umax v44, off, s[20:23], 0")
            A("buffer_atomic_umax v41, off, s[20:23], 0 offset:4")
            A("buffer_atomic_umax v40, off, s[20:23], 0 offset:8")
            for i in range(1, 8):
                A("v_sub_u32 v%d, v%d, v32" % (48 + i, 32 + i))
                A("buffer_atomic_umax v%d, off, s[20:23], 0 offset:%d" % (48 + i, 12 + 4*i))
    A("L_done:")
    A("s_endpgm")
    out += g.L
    out += ['.section .rodata,"a"', ".p2align 6", ".amdhsa_kernel " + KNAME,
            "  .amdhsa_next_free_vgpr 384", "  .amdhsa_next_free_sgpr 96", "  .amdhsa_accum_offset 256",
            "  .amdhsa_group_segment_fixed_size 0", "  .amdhsa_kernarg_size 64", "  .amdhsa_user_sgpr_count 2",
            "  .amdhsa_user_sgpr_kernarg_segment_ptr 1", "  .amdhsa_system_sgpr_workgroup_id_x 1",
            "  .amdhsa_float_denorm_mode_32 3", ".end_amdhsa_kernel"]
    return "\n".join(out) + "\n"

if __name__ == "__main__":
    kw = {}
    path = "standalone__self_sup_conv_stem_hubert__speech.s"
    for a in sys.argv[1:]:
        k, v = a.split("=")
        if k == "out": path = v
        else: kw[k] = int(v)
    open(path, "w").write(gen(**kw))
    print("wrote", path)
```

```python
import gen as G
K = G.KNAME
base = G.gen()
LAUNCH = "; @launch grid=(256,1,1) block=(256,1,1) lds=163840"
main = "; @launch kernel=%s grid=(256,1,1) block=(256,1,1) lds=163840" % K
EMPTY_CODE = '''.text
.globl empty_kernel
.p2align 8
.type empty_kernel,@function
empty_kernel:
    s_endpgm
.section .rodata,"a"
.p2align 6
.amdhsa_kernel empty_kernel
  .amdhsa_next_free_vgpr 8
  .amdhsa_next_free_sgpr 16
  .amdhsa_accum_offset 8
  .amdhsa_group_segment_fixed_size 0
  .amdhsa_kernarg_size 64
  .amdhsa_user_sgpr_count 2
  .amdhsa_user_sgpr_kernarg_segment_ptr 1
  .amdhsa_system_sgpr_workgroup_id_x 1
.end_amdhsa_kernel
'''
open("v1.s", "w").write(base)
open("v2.s", "w").write(base.replace(LAUNCH, "; @launch kernel=empty_kernel grid=(1,1,1) block=(64,1,1) lds=0\n" + main) + EMPTY_CODE)
open("v4.s", "w").write(base.replace(LAUNCH, main + "\n" + main))
open("v5.s", "w").write(base.replace(LAUNCH, main + "\n" + main + "\n" + main))
open("v6.s", "w").write(base.replace(LAUNCH, main + "\n; @launch kernel=empty_kernel grid=(1,1,1) block=(64,1,1) lds=0") + EMPTY_CODE)
```
